```python
import torch

def _softmax(x, axis=-1):
    return torch.softmax(x, dim=axis)
def _gelu(x):
    return torch.nn.functional.gelu(x, approximate="tanh")
def _silu(x):
    return torch.nn.functional.silu(x)
def _sigmoid(x):
    return torch.sigmoid(x)
def _layernorm(x, axis=-1, eps=1e-5):
    m = x.mean(dim=axis, keepdim=True)
    v = x.var(dim=axis, keepdim=True, unbiased=False)
    return (x - m) / torch.sqrt(v + eps)
def _scatter_add(tgt, idx, src, axis=0):
    return tgt.clone().index_add_(axis, idx, src)
def _segment_sum(src, seg, n):
    out = torch.zeros((n,) + src.shape[1:], dtype=src.dtype)
    return out.index_add_(0, seg, src)
def _pad(x, pw):
    flat = tuple(v for pair in reversed(pw) for v in pair)
    return torch.nn.functional.pad(x, flat)

kernel_name = 'recurrent_scan__linear_kernel_hedgehog__dense_activation_squared_relu__prompt'

def setup_inputs():

    _w = (lambda a: (lambda t: t.to(torch.bfloat16) if t.is_floating_point() else t)(torch.as_tensor(a)))
    def _A_setup():
        B, S, D, H = 1, 2048, 1024, 32
        Dh = D // H
        return {
            "x": _w((lambda *s: torch.randn(*s, dtype=torch.bfloat16) * 0.05)(B, S, D)),
            "wqkv": _w((lambda *s: torch.randn(*s, dtype=torch.bfloat16) * 0.2)(D, 3 * D)),
            "w_phi": _w((lambda *s: torch.randn(*s, dtype=torch.bfloat16) * 0.2)(H, Dh, Dh) * (Dh ** -0.5)),
            "wo": _w((lambda *s: torch.randn(*s, dtype=torch.bfloat16) * 0.05)(D, D)),
        }
    _A_in = _A_setup()

    def _B_setup():
        B, S, D, F = 1, 2048, 1024, 3584
        return {
            "x": _w((lambda *s: torch.randn(*s, dtype=torch.bfloat16) * 0.05)(B, S, D)),
            "w1": _w((lambda *s: torch.randn(*s, dtype=torch.bfloat16) * 0.05)(D, F)),
            "b1": _w((lambda *s: torch.randn(*s, dtype=torch.bfloat16) * 0.4)(F)),
            "w2": _w((lambda *s: torch.randn(*s, dtype=torch.bfloat16) * 0.05)(F, D)),
            "b2": _w((lambda *s: torch.randn(*s, dtype=torch.bfloat16) * 3.2)(D)),
        }
    _B_in = _B_setup()

    return {
        "A_x": _A_in["x"],
        "A_wqkv": _A_in["wqkv"],
        "A_w_phi": _A_in["w_phi"],
        "A_wo": _A_in["wo"],
        "B_x": _B_in["x"],
        "B_w1": _B_in["w1"],
        "B_b1": _B_in["b1"],
        "B_w2": _B_in["w2"],
        "B_b2": _B_in["b2"],
    }

def reference(A_x, A_wqkv, A_w_phi, A_wo, B_x, B_w1, B_b1, B_w2, B_b2):
    def _A_ref(x, wqkv, w_phi, wo):
        B, S, D = x.shape
        H = 32; Dh = D // H
        qkv = (lambda x, *d: x.permute(*d))((x @ wqkv).reshape(B, S, 3, H, Dh), 2, 0, 3, 1, 4)
        q, k, v = qkv[0], qkv[1], qkv[2]
        pq = torch.einsum("bhsd,hdf->bhsf", q, w_phi)
        pk = torch.einsum("bhsd,hdf->bhsf", k, w_phi)
        phi_q = torch.concatenate([_softmax(pq, axis=-1), _softmax(-pq, axis=-1)], axis=-1)
        phi_k = torch.concatenate([_softmax(pk, axis=-1), _softmax(-pk, axis=-1)], axis=-1)
        kv = torch.einsum("bhsf,bhsd->bhfd", phi_k, v)
        z  = torch.einsum("bhsf->bhf", phi_k)
        num = torch.einsum("bhqf,bhfd->bhqd", phi_q, kv)
        den = torch.einsum("bhqf,bhf->bhq", phi_q, z)[..., None] + 1e-6
        o = num / den
        return (lambda x, *d: x.permute(*d))(o, 0, 2, 1, 3).reshape(B, S, D) @ wo

    def _B_ref(x, w1, b1, w2, b2):
        h = torch.einsum("bsd,df->bsf", x, w1) + b1
        zero = torch.zeros_like(h)
        r = torch.where(h > zero, h, zero)
        h = r * r
        out = torch.einsum("bsf,fd->bsd", h, w2) + b2
        return out

    x = A_x
    xn = _layernorm(x, axis=-1)
    s = _A_ref(xn, A_wqkv, A_w_phi, A_wo)
    g = _silu(_B_ref(xn, B_w1, B_b1, B_w2, B_b2))
    return x + s * g
```

```python
import re

class Asm:
    def __init__(self):
        self.L = []
    def __call__(self, s):
        self.L.append(s)
    def lines(self, s):
        for l in s.strip().split("\n"):
            l = l.strip()
            if l: self.L.append(l)
    def extend(self, other):
        self.L.extend(other.L if isinstance(other, Asm) else other)
    def text(self):
        return "\n".join(self.L) + "\n"

def vr(b, n=1, p="v"):
    return f"{p}{b}" if n == 1 else f"{p}[{b}:{b+n-1}]"
def ar(b, n=1): return vr(b, n, "a")
def sr(b, n=1): return vr(b, n, "s")

_REG = re.compile(r"^(-|\|)?(?:abs\()?([vas])(?:\[(\d+):(\d+)\]|(\d+))\)?\|?$")
def _regs(op):
    op = op.strip()
    if op in ("vcc",): return [("s","vcc")]
    if op in ("exec",): return [("s","exec")]
    if op == "m0": return [("s","m0")]
    m = _REG.match(op)
    if not m: return []
    k = m.group(2)
    if m.group(5) is not None: lo = hi = int(m.group(5))
    else: lo, hi = int(m.group(3)), int(m.group(4))
    return [(k, i) for i in range(lo, hi+1)]

TRANS = ("v_exp_f32","v_log_f32","v_rcp_f32","v_rsq_f32","v_sqrt_f32","v_sin_f32","v_cos_f32")
class Ins:
    __slots__=("text","op","kind","dst","src","srcC","passes","is_dpp","wide_store","data")
def parse(line):
    t = line.split(";")[0].strip()
    if not t or t.endswith(":") or t.startswith("."): return None
    sp = t.split(None, 1)
    op = sp[0]; rest = sp[1] if len(sp) > 1 else ""
    ops = [o.strip() for o in rest.split(",")] if rest else []
    clean = []
    for o in ops:
        clean.append(o.split()[0] if o else o)
    I = Ins(); I.text = line; I.op = op; I.dst = []; I.src = []; I.srcC = []; I.passes = 0
    I.is_dpp = ("dpp" in op) or (" row_" in t) or (" quad_perm" in t); I.wide_store = False; I.data = []
    R = [_regs(o) for o in clean]
    if op.startswith("v_mfma"):
        I.kind = "mfma"; I.passes = 8 if "32x32" in op else 4
        I.dst = R[0]; I.src = R[1] + R[2]; I.srcC = R[3] if len(R) > 3 else []
    elif op.startswith("v_cmp"):
        I.kind = "valu"; I.dst = R[0]; I.src = sum(R[1:], [])
    elif op.startswith("v_readfirstlane") or op.startswith("v_readlane"):
        I.kind = "valu"; I.dst = R[0]; I.src = sum(R[1:], [])
    elif op.startswith("v_permlane") and "swap" in op:
        I.kind = "valu"; I.dst = R[0] + R[1]; I.src = R[0] + R[1]
    elif op.startswith("v_"):
        I.kind = "valu"; I.dst = list(R[0]); I.src = sum(R[1:], [])
        if op.startswith(("v_add_co","v_sub_co","v_addc_co","v_subb_co")):
            I.dst += R[1]; I.src = sum(R[2:], [])
        if op.startswith(("v_fmac","v_dot2c","v_pk_fmac")): I.src += R[0]
        if op.startswith("v_cndmask") and len(R) == 3: I.src.append(("s","vcc"))
        if I.is_dpp: I.src += R[0]
    elif op.startswith("ds_"):
        I.kind = "ds"
        if op.startswith(("ds_read","ds_bpermute","ds_permute","ds_swizzle")):
            I.dst = R[0]; I.src = sum(R[1:], [])
        else:
            I.src = sum(R, []); I.data = sum(R[1:], [])
    elif op.startswith(("buffer_","global_")):
        I.kind = "vmem"
        lds = " lds" in t or "_lds_" in op
        if "load" in op and not lds:
            I.dst = R[0]; I.src = sum(R[1:], [])
        elif "atomic" in op:
            I.src = sum(R, [])
            if " sc0" in t: I.dst = R[0]
        else:
            I.src = sum(R, [])
            if "store" in op:
                d = R[0] if op.startswith("buffer_") else R[1]
                I.data = d
                I.wide_store = ("x3" in op or "x4" in op)
        if lds: I.src.append(("s","m0")); I.kind = "vmem_lds"
    elif op.startswith("s_"):
        I.kind = "salu"
        if op.startswith(("s_waitcnt","s_barrier","s_nop","s_branch","s_cbranch","s_endpgm","s_setprio","s_sleep","s_cmp","s_bitcmp","s_sethalt")):
            I.src = sum(R, [])
        elif op.startswith(("s_load","s_memtime","s_memrealtime")):
            I.kind = "smem"; I.dst = R[0] if R else []; I.src = sum(R[1:], [])
        else:
            I.dst = R[0] if R else []; I.src = sum(R[1:], [])
            if "saveexec" in op: I.dst = I.dst + [("s","exec")]; I.src.append(("s","exec"))
    else:
        raise ValueError("cannot parse: " + line)
    return I

def nstates(I):
    if I.op == "s_nop":
        return int(I.text.split()[1], 0) + 1
    return 1

def required(P, C):
    need = 0
    Pd = set(P.dst); Cs = set(C.src); Cd = set(C.dst); CsC = set(C.srcC)
    vec = lambda S: {r for r in S if r[0] in "va"}
    sca = lambda S: {r for r in S if r[0] == "s"}
    if P.kind == "valu":
        w = vec(Pd)
        if C.kind == "mfma" and w & (Cs | CsC): need = max(need, 2)
        if C.kind == "valu":
            if w & Cs:
                if P.op.startswith(TRANS) and not C.op.startswith(TRANS): need = max(need, 1)
                if P.op.startswith(TRANS) and C.op.startswith(TRANS): need = max(need, 1)
                if C.op.startswith("v_permlane"): need = max(need, 2)
                if C.is_dpp: need = max(need, 2)
                if C.op.startswith(("v_readfirstlane","v_readlane")): need = max(need, 1)
            if P.op.startswith(TRANS) and (w & Cd): need = max(need, 1)
        s = sca(Pd)
        if s:
            if C.kind == "valu" and s & Cs: need = max(need, 2)
            if C.kind in ("vmem","vmem_lds") and s & Cs: need = max(need, 5)
            if C.kind in ("salu","smem") and s & Cs: need = max(need, 4)
    if P.kind == "mfma":
        d = Pd
        big = {4: 8, 8: 12}[P.passes]
        if C.kind == "mfma":
            if d & Cs: need = max(need, big)
            if d & CsC and not (set(C.srcC) == d and C.passes == P.passes):
                need = max(need, {4: 6, 8: 10}[P.passes])
            if d & Cd and not (set(C.dst) == d and set(C.srcC) == d and C.passes == P.passes):
                need = max(need, big)
        elif C.kind == "valu":
            if d & (Cs | Cd): need = max(need, big)
            if set(P.srcC) & Cd: need = max(need, {4: 3, 8: 7}[P.passes])
        elif C.kind in ("ds","vmem","vmem_lds"):
            if d & (Cs | Cd): need = max(need, big)
    if P.kind == "vmem" and P.wide_store:
        if C.kind == "valu" and set(P.data) & Cd: need = max(need, 2)
        elif set(P.data) & Cd: need = max(need, 1)
    if P.kind == "salu" and ("s","m0") in Pd and C.kind == "vmem_lds": need = max(need, 1)
    return need

def fix_hazards(lines, window=24):
    out = []; hist = []
    nins = 0
    for line in lines:
        I = parse(line)
        if I is None:
            out.append(line); continue
        dist = 0; need = 0
        for P in reversed(hist[-window:]):
            r = required(P, I)
            if r > dist: need = max(need, r - dist)
            dist += nstates(P)
            if dist >= 13: break
        while need > 0:
            k = min(need, 16)
            nop = f"s_nop {k-1}"
            out.append(nop); hist.append(parse(nop)); need -= k; nins += 1
        out.append(line); hist.append(I)
    return out
```

```python
import sys
from asmlib import *

NAME = "recurrent_scan__linear_kernel_hedgehog__dense_activation_squared_relu__prompt_kernel"

XF = 0
HF = 4 << 20
OF = 20 << 20
KVP = 24 << 20
WS_SIZE = 268435456
HT = 112 * 1024
OT = 32 * 1024
def c_ln(i): return 16 * (i >> 1) + (i & 1)
SPIN = 20000

STAGE = 28672
NS = 5
WPHI = NS * STAGE
LNX = WPHI + 2048
LDS_SIZE = LNX + 256
PHK = 0
VL = 32768
KVX = 49152
P2R = 65536

S_WG = 2; S_X3 = 3
S_I = 4; S_J = 5; S_RB = 6; S_CB = 7
SRD_Q = 8; SRD_K = 12; SRD_V = 16; SRD_H = 20; SRD_WS = 24
S_W = 28
S_KQ = 29; S_KH = 30; S_KA = 31; S_MQ = 32; S_MH = 33; S_SLOT = 34; S_RSLOT = 35; S_DELTA = 36; S_STEP = 37
S_T = 38; S_T2 = 39
SRD_A = 40; SRD_B = 44
S_PAR = 48; S_T3 = 49; S_T4 = 50; S_T5 = 51; S_CNT = 52; S_POLL = 53
S_CST = 56; S_CWR = 57; S_L2E = 58
P_X = 64; P_WQKV = 66; P_WPHI = 68; P_WO = 70; P_W1 = 74; P_B1 = 76; P_W2 = 78; P_B2 = 80; P_OUT = 82; P_DBG = 84; P_WS = 86
S_EX = 88

ACC0 = 48
def acc(ct, tt): return ACC0 + (ct * 4 + tt) * 4
V_LANE = 1; T0 = 2; T1 = 3; T2 = 4; T3 = 5
V_Q = [6, 7]; V_H = [8, 9, 10, 11, 12, 13, 14]; V_DQ = 15; V_DH = [16, 17, 18, 19]; V_A = [20, 21, 22, 23]
V_B1 = 24
A_B = 0; A_A = 52; RA = 4

def srd(a, r, plo, off_s=None, size=None, size_minus_off=True):
    if off_s is None:
        a(f"s_mov_b32 s{r}, s{plo}"); a(f"s_mov_b32 s{r+1}, s{plo+1}")
        a(f"s_mov_b32 s{r+2}, {size}")
    else:
        a(f"s_add_u32 s{r}, s{plo}, s{off_s}"); a(f"s_addc_u32 s{r+1}, s{plo+1}, 0")
        a(f"s_sub_u32 s{r+2}, {size}, s{off_s}")
    a(f"s_mov_b32 s{r+3}, 0x20000")

_lab = [0]
def label(p):
    _lab[0] += 1
    return f"L_{p}_{_lab[0]}"

def signal(a, off_s_or_int):
    L = label("sig")
    a(f"s_cmp_lg_u32 s{S_W}, 0"); a(f"s_cbranch_scc1 {L}")
    a(f"v_mov_b32 v{T0}, {off_s_or_int}"); a(f"v_mov_b32 v{T1}, 1")
    a(f"s_mov_b64 exec, 1")
    a(f"global_atomic_add v{T0}, v{T1}, s[{P_DBG}:{P_DBG+1}] sc1")
    a(f"s_mov_b64 exec, -1")
    a(f"{L}:")

def poll(a, off, need):
    L = label("pskip"); P = label("poll"); D = label("pdone")
    a(f"s_cmp_lg_u32 s{S_W}, 0"); a(f"s_cbranch_scc1 {L}")
    a(f"v_mov_b32 v{T0}, {off}"); a(f"s_mov_b32 s{S_CNT}, 0")
    a(f"{P}:")
    a(f"global_load_dword v{T1}, v{T0}, s[{P_DBG}:{P_DBG+1}] sc1")
    a("s_waitcnt vmcnt(0)")
    a(f"v_readfirstlane_b32 s{S_POLL}, v{T1}")
    a(f"s_add_u32 s{S_CNT}, s{S_CNT}, 1")
    a(f"s_cmp_ge_u32 s{S_POLL}, {need}"); a(f"s_cbranch_scc1 {L}")
    a(f"s_cmp_lt_u32 s{S_CNT}, {SPIN}"); a(f"s_cbranch_scc1 {P}")
    a(f"{L}:")

def xreduce(a, v, t, op):
    a(f"v_mov_b32 v{t}, v{v}"); a(f"v_permlane16_swap_b32 v{v}, v{t}"); a(f"{op} v{v}, v{v}, v{t}")
    a(f"v_mov_b32 v{t}, v{v}"); a(f"v_permlane32_swap_b32 v{v}, v{t}"); a(f"{op} v{v}, v{v}, v{t}")

def rbf(a, d, s):
    a(f"v_cvt_pk_bf16_f32 v{d}, v{s}, v{s}"); a(f"v_lshlrev_b32 v{d}, 16, v{d}")

def ids(a):
    a(f"s_and_b32 s{S_T}, s2, 7"); a(f"s_lshr_b32 s{S_T2}, s2, 3")
    a(f"s_and_b32 s{S_T3}, s{S_T}, 1"); a(f"s_lshr_b32 s{S_T4}, s{S_T}, 1")
    a(f"s_and_b32 s{S_T5}, s{S_T2}, 3"); a(f"s_lshr_b32 s{S_T2}, s{S_T2}, 2")
    a(f"s_lshl_b32 s{S_I}, s{S_T3}, 2"); a(f"s_add_u32 s{S_I}, s{S_I}, s{S_T5}")
    a(f"s_lshl_b32 s{S_J}, s{S_T4}, 3"); a(f"s_add_u32 s{S_J}, s{S_J}, s{S_T2}")
    a(f"s_lshl_b32 s{S_RB}, s{S_T4}, 2"); a(f"s_add_u32 s{S_RB}, s{S_RB}, s{S_T5}")
    a(f"s_lshl_b32 s{S_CB}, s{S_T3}, 3"); a(f"s_add_u32 s{S_CB}, s{S_CB}, s{S_T2}")
    a(f"s_and_b32 s{S_PAR}, s{S_J}, 1")

def p1_setup(a):
    L = V_LANE
    for m, r in enumerate((SRD_Q, SRD_K, SRD_V)):
        a(f"s_lshl_b32 s{S_T}, s{S_J}, 6"); a(f"s_add_u32 s{S_T}, s{S_T}, {m*2048}")
        srd(a, r, P_WQKV, S_T, 1024 * 6144)
    a(f"s_mul_i32 s{S_T}, s{S_J}, 224")
    srd(a, SRD_H, P_W1, S_T, 1024 * 7168)
    a(f"v_lshrrev_b32 v{T0}, 4, v{L}"); a(f"v_bfe_u32 v{T1}, v{L}, 2, 2"); a(f"v_and_b32 v{T2}, 3, v{L}")
    a(f"v_lshl_add_u32 v{T3}, v{T0}, 3, v{T1}")
    a(f"v_and_b32 v{V_Q[0]}, 1, v{T0}"); a(f"v_lshlrev_b32 v{V_Q[0]}, 5, v{V_Q[0]}")
    a(f"v_lshl_add_u32 v{V_Q[0]}, v{T3}, 6, v{V_Q[0]}"); a(f"v_lshl_add_u32 v{V_Q[0]}, v{T2}, 3, v{V_Q[0]}")
    a(f"v_xor_b32 v{V_Q[1]}, 32, v{V_Q[0]}")
    a(f"v_and_b32 v{V_H[6]}, 1, v{T0}"); a(f"v_lshl_add_u32 v{V_H[6]}, v{V_H[6]}, 2, v{T1}")
    a(f"v_lshlrev_b32 v{V_H[6]}, 5, v{V_H[6]}"); a(f"v_lshl_add_u32 v{V_H[6]}, v{T3}, 8, v{V_H[6]}")
    a(f"v_lshl_add_u32 v{V_H[6]}, v{T2}, 3, v{V_H[6]}")
    a(f"s_lshl_b32 s{S_T}, s{S_PAR}, 5")
    for t in range(6):
        a(f"v_xor_b32 v{V_H[t]}, s{S_T}, v{V_H[6]}")
        a(f"s_add_u32 s{S_T}, s{S_T}, 32")
    a(f"s_cmp_eq_u32 s{S_PAR}, 0"); a(f"s_cselect_b32 s{S_T}, 192, 0")
    a(f"v_xor_b32 v{V_H[6]}, s{S_T}, v{V_H[6]}")
    a(f"v_lshrrev_b32 v{T0}, 5, v{L}"); a(f"v_lshlrev_b32 v{T0}, 1, v{T0}"); a(f"v_xor_b32 v{T0}, v{T2}, v{T0}")
    a(f"v_lshlrev_b32 v{T0}, 4, v{T0}"); a(f"v_lshrrev_b32 v{T1}, 2, v{L}")
    a(f"v_mul_u32_u24 v{T1}, 6144, v{T1}"); a(f"v_add_u32 v{V_DQ}, v{T0}, v{T1}")
    a(f"v_lshrrev_b32 v{T0}, 4, v{L}"); a(f"v_and_b32 v{T1}, 15, v{L}")
    for ip in range(4):
        a(f"v_add_u32 v{T2}, {4*((ip>>1)&1)}, v{T0}"); a(f"v_lshlrev_b32 v{T2}, 1, v{T2}")
        a(f"v_xor_b32 v{T2}, v{T1}, v{T2}"); a(f"v_min_u32 v{T2}, 13, v{T2}"); a(f"v_lshlrev_b32 v{T2}, 4, v{T2}")
        a(f"v_add_u32 v{T3}, {4*ip}, v{T0}"); a(f"v_mul_u32_u24 v{T3}, 7168, v{T3}")
        a(f"v_add_u32 v{V_DH[ip]}, v{T2}, v{T3}")
    a(f"s_mul_i32 s{S_KQ}, s{S_W}, {16*6144}"); a(f"s_mul_i32 s{S_KH}, s{S_W}, {16*7168}")
    a(f"s_lshl_b32 s{S_MQ}, s{S_W}, 10")
    a(f"s_lshl_b32 s{S_MH}, s{S_W}, 12"); a(f"s_add_u32 s{S_MH}, s{S_MH}, 12288")
    a(f"s_mov_b32 s{S_CST}, {STAGE}"); a(f"s_mov_b32 s{S_CWR}, {-(NS-1)*STAGE}")
    a(f"s_mov_b32 s{S_SLOT}, 0"); a(f"s_mov_b32 s{S_RSLOT}, 0")

def p1_setup_a(a):
    a(f"s_lshl_b32 s{S_T}, s{S_I}, 4"); a(f"s_lshl_b32 s{S_T2}, s{S_W}, 2"); a(f"s_add_u32 s{S_T}, s{S_T}, s{S_T2}")
    a(f"s_lshl_b32 s{S_T}, s{S_T}, 15")
    a(f"v_lshlrev_b32 v{T0}, 4, v{V_LANE}")
    for tt in range(4):
        a(f"v_add_u32 v{V_A[tt]}, s{S_T}, v{T0}")
        if tt < 3: a(f"s_add_u32 s{S_T}, s{S_T}, 32768")
    a(f"s_mov_b32 s{S_KA}, 0")

def p1_a_ops(aslot):
    ops = []
    for tt in range(4):
        for ks in range(2):
            r = A_A + aslot * 32 + (ks * 4 + tt) * 4
            off = " offset:1024" if ks else ""
            ops.append((None, f"buffer_load_dwordx4 {ar(r,4)}, v{V_A[tt]}, s[{SRD_WS}:{SRD_WS+3}], s{S_KA} offen{off} sc1"))
    return ops
def p1_b_ops():
    ops = []
    for m, r in enumerate((SRD_Q, SRD_K, SRD_V)):
        ops.append((f"s_add_u32 m0, s{S_MQ}, {m*4096}", f"buffer_load_dwordx4 v{V_DQ}, s[{r}:{r+3}], s{S_KQ} offen lds"))
    for ip in range(4):
        ops.append((f"s_add_u32 m0, s{S_MH}, {ip*1024}", f"buffer_load_dwordx4 v{V_DH[ip]}, s[{SRD_H}:{SRD_H+3}], s{S_KH} offen lds"))
    return ops
def p1_adv_a(a):
    a(f"s_add_u32 s{S_KA}, s{S_KA}, 2048"); a(f"s_min_u32 s{S_KA}, s{S_KA}, {15*2048}")
def p1_adv_b(a):
    a(f"s_add_u32 s{S_KQ}, s{S_KQ}, {64*6144}"); a(f"s_min_u32 s{S_KQ}, s{S_KQ}, {(15*64+48)*6144}")
    a(f"s_add_u32 s{S_KH}, s{S_KH}, {64*7168}"); a(f"s_min_u32 s{S_KH}, s{S_KH}, {(15*64+48)*7168}")
    a(f"s_add_u32 s{S_SLOT}, s{S_SLOT}, 1"); a(f"s_cmp_eq_u32 s{S_SLOT}, {NS}")
    a(f"s_cselect_b32 s{S_T}, s{S_CWR}, s{S_CST}"); a(f"s_cselect_b32 s{S_SLOT}, 0, s{S_SLOT}")
    a(f"s_add_u32 s{S_MQ}, s{S_MQ}, s{S_T}"); a(f"s_add_u32 s{S_MH}, s{S_MH}, s{S_T}")

def p1_tile_reads(n):
    ks, ct = divmod(n, 13)
    dst = A_B + ct * 4
    out = []
    for hh in range(2):
        if ct < 6:
            m, tp = divmod(ct, 2)
            off = m * 4096 + 2048 * ks + 256 * hh; v = V_Q[tp]
        else:
            off = 12288 + 8192 * ks + 1024 * hh; v = V_H[ct - 6]
        out.append(f"ds_read_b64_tr_b16 {ar(dst+2*hh,2)}, v{v} offset:{off}")
    return out

def p1_step(a, s):
    aslot = s % RA
    ops = p1_a_ops((s + 3) % RA) + p1_b_ops()
    vm_at = [int(i * 22 / 15) for i in range(15)]
    pending = list(zip(vm_at, ops))
    for n in range(26):
        ks, ct = divmod(n, 13)
        if n == 23:
            a(f"s_waitcnt vmcnt({23 if s % RA == 0 else 30})")
            a("s_barrier")
        rd = p1_tile_reads((n + 3) % 26)
        a("s_waitcnt lgkmcnt(4)")
        slots = [[rd[0]], [rd[1]], [], []]
        k = 2
        for pre, inst in [op for (t, op) in pending if t == n]:
            if pre: slots[2].append(pre); slots[3].append(inst)
            else: slots[k].append(inst); k = 5 - k
        if n == 16:
            slots[2] += [f"s_add_u32 s{S_RSLOT}, s{S_RSLOT}, 1", f"s_cmp_eq_u32 s{S_RSLOT}, {NS}",
                         f"s_cselect_b32 s{S_DELTA}, s{S_CWR}, s{S_CST}", f"s_cselect_b32 s{S_RSLOT}, 0, s{S_RSLOT}"]
        if n == 17: slots[3].append(f"v_add_u32 v{V_Q[0]}, s{S_DELTA}, v{V_Q[0]}")
        if n == 18: slots[3].append(f"v_add_u32 v{V_Q[1]}, s{S_DELTA}, v{V_Q[1]}")
        if 17 <= n <= 22: slots[3].append(f"v_add_u32 v{V_H[n-17]}, s{S_DELTA}, v{V_H[n-17]}")
        if n == 23: slots[3].append(f"v_add_u32 v{V_H[6]}, s{S_DELTA}, v{V_H[6]}")
        if n == 22:
            t = Asm(); p1_adv_a(t); p1_adv_b(t); slots[2] += t.L
        for tt in range(4):
            xa = A_A + aslot * 32 + (ks * 4 + tt) * 4
            c = acc(ct, tt)
            a(f"v_mfma_f32_16x16x32_bf16 {vr(c,4)}, {ar(A_B+ct*4,4)}, {ar(xa,4)}, {vr(c,4)}")
            for x in slots[tt]: a(x)

def phase0(a, o):
    L = V_LANE
    XR = 80
    XD = 48
    a(f"s_cmp_ge_u32 s2, 256"); a("s_cbranch_scc1 L_end")
    a(f"s_load_dwordx16 s[64:79], s[0:1], 0"); a(f"s_load_dwordx8 s[80:87], s[0:1], 64")
    a(f"v_and_b32 v{L}, 63, v0"); a(f"v_lshrrev_b32 v{T0}, 6, v0")
    a(f"v_readfirstlane_b32 s{S_W}, v{T0}")
    ids(a)
    a(f"v_and_b32 v{T0}, 7, v{L}"); a(f"v_lshrrev_b32 v{T1}, 3, v{L}")
    a(f"v_lshlrev_b32 v96, 11, v{T0}"); a(f"v_lshl_add_u32 v96, v{T1}, 4, v96")
    a(f"v_lshrrev_b32 v97, 2, v{T1}"); a(f"v_lshlrev_b32 v97, 10, v97"); a(f"v_and_b32 v{T1}, 3, v{T1}")
    a(f"v_lshl_add_u32 v97, v{T1}, 8, v97"); a(f"v_lshl_add_u32 v97, v{T0}, 4, v97")
    a(f"s_lshl_b32 s{S_X3}, s2, 14"); a(f"s_lshl_b32 s{S_T}, s{S_W}, 9"); a(f"s_add_u32 s{S_X3}, s{S_X3}, s{S_T}")
    a("s_waitcnt lgkmcnt(0)")
    srd(a, SRD_A, P_X, None, 2048 * 2048)
    for jj in range(4):
        a(f"buffer_load_dwordx4 {vr(XR+4*jj,4)}, v96, s[{SRD_A}:{SRD_A+3}], s{S_X3} offen offset:{128*jj}")
    srd(a, SRD_WS, P_WS, None, WS_SIZE)
    p1_setup(a)
    nlater = 0
    for s in range(3):
        for pre, inst in p1_b_ops():
            a(pre); a(inst); nlater += 1
        p1_adv_b(a)
    a(f"s_lshl_b32 s{S_T}, s{S_J}, 11"); srd(a, SRD_B, P_WPHI, S_T, 32 * 2048)
    a(f"s_and_b32 s{S_T}, s{S_W}, 1"); a(f"s_lshl_b32 s{S_T}, s{S_T}, 10")
    a(f"s_add_u32 m0, s{S_T}, {WPHI}"); a(f"v_lshlrev_b32 v{T0}, 4, v{L}")
    a(f"buffer_load_dwordx4 v{T0}, s[{SRD_B}:{SRD_B+3}], s{S_T} offen lds"); nlater += 1
    a(f"s_mul_i32 s{S_T}, s{S_J}, 224"); srd(a, SRD_B, P_B1, S_T, 3584 * 2)
    a(f"v_lshrrev_b32 v{T0}, 4, v{L}"); a(f"v_lshlrev_b32 v{T0}, 3, v{T0}")
    a(f"s_lshl_b32 s{S_T}, s{S_PAR}, 5")
    a(f"s_cmp_eq_u32 s{S_PAR}, 0"); a(f"s_cselect_b32 s{S_T2}, 192, 0")
    for t in range(7):
        so, off = (S_T, 32 * t) if t < 6 else (S_T2, 0)
        a(f"buffer_load_dwordx2 {vr(V_B1+2*t,2)}, v{T0}, s[{SRD_B}:{SRD_B+3}], s{so} offen offset:{off}"); nlater += 1
    p1_setup_a(a)
    a(f"s_waitcnt vmcnt({nlater})")
    for q in range(16):
        a(f"v_lshlrev_b32 v{XD+2*q}, 16, v{XR+q}"); a(f"v_and_b32 v{XD+2*q+1}, 0xffff0000, v{XR+q}")
    S = [98, 99, 100, 101]
    for c in range(4):
        a(f"v_add_f32 v{S[c]}, v{XD+c}, v{XD+4+c}")
    for q in range(8, 32, 4):
        for c in range(4): a(f"v_add_f32 v{S[c]}, v{S[c]}, v{XD+q+c}")
    a(f"v_add_f32 v98, v98, v99"); a(f"v_add_f32 v100, v100, v101"); a(f"v_add_f32 v98, v98, v100")
    a(f"v_add_f32_dpp v98, v98, v98 row_ror:8 row_mask:0xf bank_mask:0xf")
    xreduce(a, 98, 99, "v_add_f32")
    a(f"v_mul_f32 v102, {1/256}, v98")
    for q in range(32): a(f"v_sub_f32 v{XD+q}, v{XD+q}, v102")
    for c in range(4): a(f"v_mul_f32 v{S[c]}, v{XD+c}, v{XD+c}")
    for q in range(4, 32, 4):
        for c in range(4): a(f"v_fmac_f32 v{S[c]}, v{XD+q+c}, v{XD+q+c}")
    a(f"v_add_f32 v98, v98, v99"); a(f"v_add_f32 v100, v100, v101"); a(f"v_add_f32 v98, v98, v100")
    a(f"v_add_f32_dpp v98, v98, v98 row_ror:8 row_mask:0xf bank_mask:0xf")
    xreduce(a, 98, 99, "v_add_f32")
    a(f"v_mov_b32 v103, v98")
    a(f"v_and_b32 v{T0}, 7, v{L}"); a(f"v_lshlrev_b32 v{T0}, 3, v{T0}")
    a(f"s_lshl_b32 s{S_T}, s{S_W}, 6"); a(f"s_add_u32 s{S_T}, s{S_T}, {LNX}")
    a(f"v_add_u32 v{T1}, s{S_T}, v{T0}"); a(f"v_add_u32 v{T0}, {LNX}, v{T0}")
    a(f"ds_write_b64 v{T1}, v[102:103]")
    a("s_waitcnt lgkmcnt(0)"); a("s_barrier")
    for w in range(4): a(f"ds_read_b64 v[{104+2*w}:{105+2*w}], v{T0} offset:{64*w}")
    a("s_waitcnt lgkmcnt(0)")
    a("v_add_f32 v98, v104, v106"); a("v_add_f32 v99, v108, v110"); a("v_add_f32 v98, v98, v99")
    a("v_mul_f32 v98, 0.25, v98")
    a("v_add_f32 v99, v105, v107"); a("v_add_f32 v100, v109, v111"); a("v_add_f32 v99, v99, v100")
    for w in range(4): a(f"v_sub_f32 v{104+2*w}, v{104+2*w}, v98")
    a("v_mul_f32 v100, v104, v104")
    for w in range(1, 4): a(f"v_fmac_f32 v100, v{104+2*w}, v{104+2*w}")
    a(f"v_fmac_f32 v99, 0x43800000, v100")
    a(f"v_mul_f32 v99, {1/1024}, v99")
    rbf(a, 98, 98); rbf(a, 99, 99)
    a("v_add_f32 v99, 0x3727c5ac, v99")
    rbf(a, 99, 99)
    a("v_sqrt_f32 v99, v99")
    rbf(a, 99, 99)
    a("v_rcp_f32 v99, v99")
    a("v_sub_f32 v100, v102, v98"); a("v_mul_f32 v100, v100, v99")
    for q in range(32): a(f"v_fma_f32 v{XD+q}, v{XD+q}, v99, v100")
    for q in range(16): a(f"v_cvt_pk_bf16_f32 v{XR+q}, v{XD+2*q}, v{XD+2*q+1}")
    a(f"s_lshr_b32 s{S_T}, s2, 1"); a(f"s_lshl_b32 s{S_T}, s{S_T}, 15")
    a(f"s_lshl_b32 s{S_T2}, s{S_W}, 13"); a(f"s_add_u32 s{S_T}, s{S_T}, s{S_T2}")
    a(f"s_and_b32 s{S_T2}, s2, 1"); a(f"s_lshl_b32 s{S_T2}, s{S_T2}, 7"); a(f"s_add_u32 s{S_T}, s{S_T}, s{S_T2}")
    a(f"s_add_u32 s{S_T2}, s{S_T}, 4096")
    for jj in range(4):
        so = S_T if jj < 2 else S_T2
        a(f"buffer_store_dwordx4 {vr(XR+4*jj,4)}, v97, s[{SRD_WS}:{SRD_WS+3}], s{so} offen offset:{2048*(jj&1)} sc1")
    a("s_waitcnt vmcnt(4)")
    for t in range(7):
        c = acc(6 + t, 0); b = V_B1 + 2 * t
        a(f"v_lshlrev_b32 v{c}, 16, v{b}"); a(f"v_and_b32 v{c+1}, 0xffff0000, v{b}")
        a(f"v_lshlrev_b32 v{c+2}, 16, v{b+1}"); a(f"v_and_b32 v{c+3}, 0xffff0000, v{b+1}")
        for tt in range(1, 4):
            for r in range(4): a(f"v_mov_b32 v{acc(6+t,tt)+r}, v{c+r}")
    for r in range(ACC0, acc(6, 0)): a(f"v_mov_b32 v{r}, 0")
    a("s_waitcnt vmcnt(0)"); a("s_barrier")
    a(f"s_lshr_b32 s{S_T}, s2, 5"); cnt_off(a, S_T, 0, S_T2); signal(a, f"s{S_T2}")
    for n in range(3):
        for inst in p1_tile_reads(n): a(inst)
    cnt_off(a, S_I, 0, S_T2); poll(a, f"s{S_T2}", 32)
    a("s_barrier")
    for s in range(3):
        for pre, inst in p1_a_ops(s): a(inst)
        p1_adv_a(a)
    a("s_waitcnt vmcnt(16)")

def cnt_off(a, s_i, k, dst):
    a(f"s_lshr_b32 s{dst}, s{s_i}, 1"); a(f"s_lshl_b32 s{dst}, s{dst}, 6")
    a(f"s_and_b32 s{S_T3}, s{s_i}, 1"); a(f"s_lshl_b32 s{S_T3}, s{S_T3}, 2")
    a(f"s_add_u32 s{dst}, s{dst}, s{S_T3}")
    if k: a(f"s_add_u32 s{dst}, s{dst}, {4*k}")
def kv_off(a, dst):
    a(f"s_lshr_b32 s{dst}, s{S_J}, 3"); a(f"s_lshl_b32 s{dst}, s{dst}, 6")
    a(f"s_and_b32 s{S_T3}, s{S_J}, 7"); a(f"s_lshl_b32 s{S_T3}, s{S_T3}, 2")
    a(f"s_add_u32 s{dst}, s{dst}, s{S_T3}"); a(f"s_add_u32 s{dst}, s{dst}, 32")

def p1_main(a, o):
    a(f"s_mov_b32 s{S_STEP}, 0")
    a(".p2align 3")
    a("L_p1_loop:")
    for s in range(RA): p1_step(a, s)
    a(f"s_add_u32 s{S_STEP}, s{S_STEP}, {RA}"); a(f"s_cmp_lt_u32 s{S_STEP}, 16")
    a("s_cbranch_scc1 L_p1_loop")

QF = 144; KF = 160; VF = 176
PQ = 48; PK = 80
PHQ = 192
PHKR = 224
E0 = 112

def h_part(a):
    a(f"s_lshl_b32 s{S_T}, s{S_I}, 4"); a(f"s_lshl_b32 s{S_T2}, s{S_W}, 2"); a(f"s_add_u32 s{S_T}, s{S_T}, s{S_T2}")
    a(f"s_mul_i32 s{S_T}, s{S_T}, {HT}"); a(f"s_add_u32 s{S_T}, s{S_T}, {HF}")
    a(f"s_mul_i32 s{S_T2}, s{S_J}, 7"); a(f"s_add_u32 s{S_T2}, s{S_T2}, 1"); a(f"s_lshr_b32 s{S_T2}, s{S_T2}, 1")
    a(f"s_cmp_eq_u32 s{S_PAR}, 0"); a(f"s_cselect_b32 s{S_T3}, 3, -1"); a(f"s_add_u32 s{S_T3}, s{S_T2}, s{S_T3}")
    a(f"s_lshl_b32 s{S_T2}, s{S_T2}, 10"); a(f"s_lshl_b32 s{S_T3}, s{S_T3}, 10")
    a(f"s_add_u32 s{S_T4}, s{S_T}, s{S_T2}")
    a(f"s_add_u32 s{S_T5}, s{S_T}, s{S_T3}")
    a(f"v_lshlrev_b32 v{T0}, 4, v{V_LANE}")
    a(f"s_lshl_b32 s{S_T}, s{S_PAR}, 3"); a(f"v_add_u32 v{T1}, s{S_T}, v{T0}")
    tmp = [24, 28, 32, 36, 40, 44]; ti = 0
    def sq(c):
        for r in range(4): a(f"v_max_f32 v{c+r}, 0, v{c+r}")
        for r in range(4): a(f"v_mul_f32 v{c+r}, v{c+r}, v{c+r}")
    for tt in range(4):
        for t in range(3):
            d = tmp[ti % 6]; ti += 1
            c0, c1 = acc(6 + 2 * t, tt), acc(7 + 2 * t, tt)
            sq(c0); sq(c1)
            a(f"v_cvt_pk_bf16_f32 v{d}, v{c0}, v{c0+1}"); a(f"v_cvt_pk_bf16_f32 v{d+1}, v{c0+2}, v{c0+3}")
            a(f"v_cvt_pk_bf16_f32 v{d+2}, v{c1}, v{c1+1}"); a(f"v_cvt_pk_bf16_f32 v{d+3}, v{c1+2}, v{c1+3}")
            a(f"buffer_store_dwordx4 {vr(d,4)}, v{T0}, s[{SRD_WS}:{SRD_WS+3}], s{S_T4} offen offset:{1024*t} sc1")
        d = tmp[ti % 6]; ti += 1
        c0 = acc(12, tt); sq(c0)
        a(f"v_cvt_pk_bf16_f32 v{d}, v{c0}, v{c0+1}"); a(f"v_cvt_pk_bf16_f32 v{d+1}, v{c0+2}, v{c0+3}")
        a(f"buffer_store_dwordx2 {vr(d,2)}, v{T1}, s[{SRD_WS}:{SRD_WS+3}], s{S_T5} offen sc1")
        if tt < 3:
            a(f"s_add_u32 s{S_T4}, s{S_T4}, {HT}"); a(f"s_add_u32 s{S_T5}, s{S_T5}, {HT}")

def cvt4(a, d, c0, c1):
    a(f"v_cvt_pk_bf16_f32 v{d}, v{c0}, v{c0+1}"); a(f"v_cvt_pk_bf16_f32 v{d+1}, v{c0+2}, v{c0+3}")
    a(f"v_cvt_pk_bf16_f32 v{d+2}, v{c1}, v{c1+1}"); a(f"v_cvt_pk_bf16_f32 v{d+3}, v{c1+2}, v{c1+3}")

def quad_reduce(a, A, B, C, D, t, op):
    a(f"v_permlane32_swap_b32 v{A}, v{B}"); a(f"v_permlane32_swap_b32 v{C}, v{D}")
    a(f"{op} v{A}, v{A}, v{B}"); a(f"{op} v{C}, v{C}, v{D}")
    a(f"v_permlane16_swap_b32 v{A}, v{C}")
    a(f"{op} v{A}, v{A}, v{C}")
    a(f"v_mov_b32 v{C}, v{A}")
    a(f"v_permlane16_swap_b32 v{A}, v{C}")
    a(f"v_mov_b32 v{B}, v{A}"); a(f"v_mov_b32 v{D}, v{C}")
    a(f"v_permlane32_swap_b32 v{A}, v{B}"); a(f"v_permlane32_swap_b32 v{C}, v{D}")

def softmax_pair(a, pbase, tta, ttb, outs):
    P = lambda tt: [pbase + tt * 4 + r for r in range(4)] + [pbase + 16 + tt * 4 + r for r in range(4)]
    tiles = [P(tta), P(ttb)]
    M = [24, 25, 26, 27]
    for ti, p in enumerate(tiles):
        mx, nm = M[2 * ti], M[2 * ti + 1]
        a(f"v_max3_f32 v{mx}, v{p[0]}, v{p[1]}, v{p[2]}"); a(f"v_max3_f32 v{nm}, -v{p[0]}, -v{p[1]}, -v{p[2]}")
        a(f"v_max3_f32 v{mx}, v{mx}, v{p[3]}, v{p[4]}"); a(f"v_max3_f32 v{nm}, v{nm}, -v{p[3]}, -v{p[4]}")
        a(f"v_max3_f32 v{mx}, v{mx}, v{p[5]}, v{p[6]}"); a(f"v_max3_f32 v{nm}, v{nm}, -v{p[5]}, -v{p[6]}")
        a(f"v_max_f32 v{mx}, v{mx}, v{p[7]}"); a(f"v_max_f32 v{nm}, v{nm}, -v{p[7]}")
    quad_reduce(a, M[0], M[1], M[2], M[3], 28, "v_max_f32")
    for m in M: a(f"v_mul_f32 v{m}, s{S_L2E}, v{m}")
    for ti, p in enumerate(tiles):
        e = [E0 + 8 * ti + q for q in range(8)]
        for q in range(8): a(f"v_fma_f32 v{e[q]}, v{p[q]}, s{S_L2E}, -v{M[2*ti]}")
        for q in range(8): a(f"v_fma_f32 v{p[q]}, -v{p[q]}, s{S_L2E}, -v{M[2*ti+1]}")
    for ti, p in enumerate(tiles):
        e = [E0 + 8 * ti + q for q in range(8)]
        for q in range(8): a(f"v_exp_f32 v{e[q]}, v{e[q]}")
        for q in range(8): a(f"v_exp_f32 v{p[q]}, v{p[q]}")
    Sx = [24, 25, 26, 27]; tq = [28, 29, 30, 31]
    for ti, p in enumerate(tiles):
        e = [E0 + 8 * ti + q for q in range(8)]
        for k, src in enumerate((e, p)):
            s = Sx[2 * ti + k]; t = tq[2 * ti + k]
            a(f"v_add_f32 v{s}, v{src[0]}, v{src[1]}"); a(f"v_add_f32 v{t}, v{src[2]}, v{src[3]}")
            a(f"v_add_f32 v{s}, v{s}, v{src[4]}"); a(f"v_add_f32 v{t}, v{t}, v{src[5]}")
            a(f"v_add_f32 v{s}, v{s}, v{src[6]}"); a(f"v_add_f32 v{t}, v{t}, v{src[7]}")
            a(f"v_add_f32 v{s}, v{s}, v{t}")
    quad_reduce(a, Sx[0], Sx[1], Sx[2], Sx[3], 28, "v_add_f32")
    for s in Sx: a(f"v_rcp_f32 v{s}, v{s}")
    for ti, p in enumerate(tiles):
        e = [E0 + 8 * ti + q for q in range(8)]
        for k, src in enumerate((e, p)):
            for q in range(8): a(f"v_mul_f32 v{src[q]}, v{src[q]}, v{Sx[2*ti+k]}")
            d = outs[ti][k]
            for q in range(4): a(f"v_cvt_pk_bf16_f32 v{d+q}, v{src[2*q]}, v{src[2*q+1]}")

V_PW = 40; V_VW = 41; V_PR = 42; V_VR = 43; V_L16 = 44
def mid(a, o):
    L = V_LANE
    h_part(a)
    a("s_waitcnt lgkmcnt(0)")
    a(f"v_lshrrev_b32 v{T0}, 4, v{L}"); a(f"v_bfe_u32 v{T1}, v{L}, 2, 2"); a(f"v_and_b32 v{T2}, 3, v{L}")
    a(f"v_lshl_add_u32 v{T3}, v{T0}, 2, v{T1}")
    a(f"v_lshlrev_b32 v45, 6, v{T3}"); a(f"v_lshl_add_u32 v45, v{T2}, 3, v45"); a(f"v_add_u32 v45, {WPHI}, v45")
    for ft in range(2):
        for hh in range(2):
            a(f"ds_read_b64_tr_b16 {ar(4*ft+2*hh,2)}, v45 offset:{32*ft+1024*hh}")
    a(f"v_lshrrev_b32 v46, 1, v{T3}"); a(f"v_and_b32 v46, 3, v46"); a(f"v_xor_b32 v46, s{S_W}, v46")
    a(f"v_lshlrev_b32 v46, 5, v46"); a(f"v_lshl_add_u32 v46, v{T3}, 7, v46"); a(f"v_lshl_add_u32 v{V_PR}, v{T2}, 3, v46")
    a(f"v_and_b32 v46, 1, v{T0}"); a(f"v_lshlrev_b32 v46, 5, v46"); a(f"v_lshl_add_u32 v46, v{T3}, 6, v46")
    a(f"v_lshl_add_u32 v46, v{T2}, 3, v46"); a(f"v_add_u32 v{V_VR}, {VL}, v46")
    a(f"v_and_b32 v{T1}, 15, v{L}"); a(f"s_lshl_b32 s{S_T}, s{S_W}, 6"); a(f"v_add_u32 v{T3}, s{S_T}, v{T1}")
    a(f"v_bfe_u32 v46, v{L}, 1, 2"); a(f"v_lshlrev_b32 v46, 5, v46"); a(f"v_lshl_add_u32 v46, v{T3}, 7, v46")
    a(f"v_lshl_add_u32 v{V_PW}, v{T0}, 3, v46")
    a(f"v_bfe_u32 v46, v{L}, 2, 1"); a(f"v_lshlrev_b32 v46, 5, v46"); a(f"v_lshl_add_u32 v46, v{T3}, 6, v46")
    a(f"v_lshl_add_u32 v46, v{T0}, 3, v46"); a(f"v_add_u32 v{V_VW}, {VL}, v46")
    a(f"v_lshlrev_b32 v{V_L16}, 4, v{L}")
    a(f"s_mov_b32 s{S_L2E}, 0x3fb8aa3b")
    for tt in range(4):
        cvt4(a, KF + 4 * tt, acc(2, tt), acc(3, tt))
    for tt in range(4):
        cvt4(a, QF + 4 * tt, acc(0, tt), acc(1, tt))
    for dt in range(2):
        for tt in range(4):
            c = acc(4 + dt, tt); d = VF + (dt * 4 + tt) * 2
            a(f"v_cvt_pk_bf16_f32 v{d}, v{c}, v{c+1}"); a(f"v_cvt_pk_bf16_f32 v{d+1}, v{c+2}, v{c+3}")
    a("s_waitcnt lgkmcnt(0)")
    for tt in range(4):
        for ft in range(2):
            a(f"v_mfma_f32_16x16x32_bf16 {vr(PK+(ft*4+tt)*4,4)}, {ar(4*ft,4)}, {vr(KF+4*tt,4)}, 0")
    for tt in range(4):
        for ft in range(2):
            a(f"v_mfma_f32_16x16x32_bf16 {vr(PQ+(ft*4+tt)*4,4)}, {ar(4*ft,4)}, {vr(QF+4*tt,4)}, 0")
    PK_OUT = 144
    softmax_pair(a, PK, 0, 1, [(PK_OUT, PK_OUT + 4), (PK_OUT + 8, PK_OUT + 12)])
    softmax_pair(a, PK, 2, 3, [(PK_OUT + 16, PK_OUT + 20), (PK_OUT + 24, PK_OUT + 28)])
    a("s_waitcnt vmcnt(0)"); a("s_barrier")
    cnt_off(a, S_I, 2, S_T2); signal(a, f"s{S_T2}")
    p2_prefetch_b(a)
    for ftp in range(4):
        if ftp: a(f"v_xor_b32 v46, {32*ftp}, v{V_PW}")
        for tt in range(4):
            src = PK_OUT + 8 * tt + 2 * ftp
            a(f"ds_write_b64 v{46 if ftp else V_PW}, {vr(src,2)} offset:{2048*tt}")
    a(f"v_xor_b32 v46, 32, v{V_VW}")
    for dt in range(2):
        for tt in range(4):
            a(f"ds_write_b64 v{46 if dt else V_VW}, {vr(VF+(dt*4+tt)*2,2)} offset:{1024*tt}")
    a(f"v_xor_b32 v47, 32, v{V_VR}")
    for r in range(4): a(f"v_mov_b32 v{28+r}, 0x3f803f80")
    a("s_waitcnt lgkmcnt(0)"); a("s_barrier")
    KD = 112
    FR = 8
    def kv_reads(ks):
        b = FR + (ks % 4) * 12
        for hh in range(2): a(f"ds_read_b64_tr_b16 {ar(b+2*hh,2)}, v{V_PR} offset:{PHK+4096*ks+2048*hh}")
        for dt in range(2):
            for hh in range(2):
                a(f"ds_read_b64_tr_b16 {ar(b+4+4*dt+2*hh,2)}, v{47 if dt else V_VR} offset:{2048*ks+1024*hh}")
    kv_reads(0)
    for ks in range(8):
        if ks + 1 < 8:
            kv_reads(ks + 1); a("s_waitcnt lgkmcnt(6)")
        else: a("s_waitcnt lgkmcnt(0)")
        b = FR + (ks % 4) * 12
        for dt in range(3):
            c = "0" if ks == 0 else vr(KD + 4 * dt, 4)
            srcb = ar(b + 4 + 4 * dt, 4) if dt < 2 else vr(28, 4)
            a(f"v_mfma_f32_16x16x32_bf16 {vr(KD+4*dt,4)}, {ar(b,4)}, {srcb}, {c}")
    a(f"s_lshl_b32 s{S_T}, s{S_J}, 3"); a(f"s_add_u32 s{S_T}, s{S_T}, s{S_I}"); a(f"s_lshl_b32 s{S_T}, s{S_T}, 2")
    a(f"s_add_u32 s{S_T}, s{S_T}, s{S_W}"); a(f"s_mul_i32 s{S_T}, s{S_T}, 3072"); a(f"s_add_u32 s{S_T}, s{S_T}, {KVP}")
    for dt in range(3):
        a(f"buffer_store_dwordx4 {vr(KD+4*dt,4)}, v{V_L16}, s[{SRD_WS}:{SRD_WS+3}], s{S_T} offen offset:{1024*dt} sc1")
    softmax_q0 = lambda: softmax_pair(a, PQ, 0, 1, [(PHQ, PHQ + 4), (PHQ + 8, PHQ + 12)])
    E_save = None
    a("s_nop 1")
    softmax_q0()
    a("s_waitcnt vmcnt(0)"); a("s_barrier")
    kv_off(a, S_T2); signal(a, f"s{S_T2}")
    softmax_pair(a, PQ, 2, 3, [(PHQ + 16, PHQ + 20), (PHQ + 24, PHQ + 28)])
    kv_off(a, S_T2); poll(a, f"s{S_T2}", 8)
    a("s_barrier")
    a(f"s_lshl_b32 s{S_T}, s{S_J}, 5"); a(f"s_add_u32 s{S_T}, s{S_T}, s{S_W}"); a(f"s_mul_i32 s{S_T}, s{S_T}, 3072")
    a(f"s_add_u32 s{S_T}, s{S_T}, {KVP}")
    for i in range(8):
        for dt in range(3):
            a(f"buffer_load_dwordx4 {vr(48+(i*3+dt)*4,4)}, v{V_L16}, s[{SRD_WS}:{SRD_WS+3}], s{S_T} offen offset:{1024*dt} sc1")
        if i < 7: a(f"s_add_u32 s{S_T}, s{S_T}, 12288")
    for i in range(1, 8):
        a(f"s_waitcnt vmcnt({(7-i)*3})")
        for q in range(12): a(f"v_add_f32 v{48+q}, v{48+q}, v{48+12*i+q}")
    for dt in range(3):
        a(f"v_cvt_pk_bf16_f32 v{60+2*dt}, v{48+4*dt}, v{48+4*dt+1}"); a(f"v_cvt_pk_bf16_f32 v{61+2*dt}, v{48+4*dt+2}, v{48+4*dt+3}")
    a(f"s_lshr_b32 s{S_T}, s{S_W}, 1"); a(f"s_lshl_b32 s{S_T}, s{S_T}, 10"); a(f"s_and_b32 s{S_T2}, s{S_W}, 1")
    a(f"s_lshl_b32 s{S_T2}, s{S_T2}, 3"); a(f"s_add_u32 s{S_T}, s{S_T}, s{S_T2}"); a(f"s_add_u32 s{S_T}, s{S_T}, {KVX}")
    a(f"v_add_u32 v46, s{S_T}, v{V_L16}")
    for dt in range(3): a(f"ds_write_b64 v46, {vr(60+2*dt,2)} offset:{2048*dt}")
    a("s_waitcnt lgkmcnt(0)"); a("s_barrier")
    a(f"v_add_u32 v46, {KVX}, v{V_L16}")
    KA = 64
    for dt in range(3):
        for s in range(2): a(f"ds_read_b128 {vr(KA+(dt*2+s)*4,4)}, v46 offset:{(dt*2+s)*1024}")
    a("s_waitcnt lgkmcnt(0)")
    ND = 96
    for s in range(2):
        for dt in range(3):
            for tt in range(4):
                d = ND + (dt * 4 + tt) * 4
                c = "0" if s == 0 else vr(d, 4)
                a(f"v_mfma_f32_16x16x32_bf16 {vr(d,4)}, {vr(KA+(dt*2+s)*4,4)}, {vr(PHQ+8*tt+4*s,4)}, {c}")
    a(f"s_lshl_b32 s{S_T}, s{S_I}, 4"); a(f"s_lshl_b32 s{S_T2}, s{S_W}, 2"); a(f"s_add_u32 s{S_T}, s{S_T}, s{S_T2}")
    a(f"s_lshl_b32 s{S_T}, s{S_T}, 5"); a(f"s_add_u32 s{S_T}, s{S_T}, s{S_J}"); a(f"s_lshl_b32 s{S_T}, s{S_T}, 10")
    a(f"s_add_u32 s{S_T}, s{S_T}, {OF}")
    for tt in range(4):
        den = ND + (8 + tt) * 4
        a(f"v_add_f32 v{den}, 0x358637bd, v{den}"); a(f"v_rcp_f32 v{den}, v{den}")
        for dt in range(2):
            c = ND + (dt * 4 + tt) * 4
            for r in range(4): a(f"v_mul_f32 v{c+r}, v{c+r}, v{den}")
        cvt4(a, 48 + 4 * tt, ND + tt * 4, ND + (4 + tt) * 4)
        a(f"buffer_store_dwordx4 {vr(48+4*tt,4)}, v{V_L16}, s[{SRD_WS}:{SRD_WS+3}], s{S_T} offen sc1")
        if tt < 3: a(f"s_add_u32 s{S_T}, s{S_T}, {OT}")

SRD_W2 = 8
S2_KA = 29; S2_KB = 30; S2_MB = 31; S2_LST = 32; S2_KAMAX = 33; S2_KBMAX = 34; S2_IT = 35
V2_A = [6, 7]; V2_DB = [8, 9]; V2_R = [10, 11, 12, 13]
V2_X = 14
V2_XO = 30
ACC_O = 48; ACC_S = 80
def acc2(base, ct, tt): return base + (ct * 2 + tt) * 4
A2_B = 0; A2_A = 128; ND2 = 6

def p2_b_ops(stage):
    return [(f"s_add_u32 m0, s{S2_MB}, {stage*8192 + d*1024}",
             f"buffer_load_dwordx4 v{V2_DB[d]}, s[{SRD_W2}:{SRD_W2+3}], s{S2_KB} offen lds") for d in range(2)]
def p2_a_ops(slot):
    ops = []
    for ks in range(2):
        for tt in range(2):
            r = A2_A + slot * 16 + (ks * 2 + tt) * 4
            off = " offset:1024" if ks else ""
            ops.append((None, f"buffer_load_dwordx4 {ar(r,4)}, v{V2_A[tt]}, s[{SRD_WS}:{SRD_WS+3}], s{S2_KA} offen{off} sc1"))
    return ops
def p2_adv_b(a):
    a(f"s_add_u32 s{S2_KB}, s{S2_KB}, {64*2048}"); a(f"s_min_u32 s{S2_KB}, s{S2_KB}, s{S2_KBMAX}")
def p2_adv_a(a):
    a(f"s_add_u32 s{S2_KA}, s{S2_KA}, 2048"); a(f"s_min_u32 s{S2_KA}, s{S2_KA}, s{S2_KAMAX}")

def p2_prefetch_b(a):
    L = V_LANE
    a(f"s_lshl_b32 s{S_T}, s{S_CB}, 7"); srd(a, SRD_W2, P_W2, S_T, 3584 * 2048)
    a(f"v_lshrrev_b32 v{T0}, 3, v{L}"); a(f"v_and_b32 v{T1}, 7, v{L}"); a(f"v_and_b32 v{T2}, 6, v{T0}")
    a(f"v_xor_b32 v{T1}, v{T1}, v{T2}"); a(f"v_lshlrev_b32 v{T1}, 4, v{T1}")
    a(f"v_lshl_add_u32 v{V2_DB[0]}, v{T0}, 11, v{T1}"); a(f"v_add_u32 v{V2_DB[1]}, 16384, v{V2_DB[0]}")
    a(f"s_lshl_b32 s{S2_KB}, s{S_W}, 15")
    a(f"s_add_u32 s{S2_KBMAX}, s{S2_KB}, {55*64*2048}")
    a(f"s_lshl_b32 s{S2_MB}, s{S_W}, 11"); a(f"s_add_u32 s{S2_MB}, s{S2_MB}, {P2R}")
    for st in range(ND2):
        for pre, inst in p2_b_ops(st): a(pre); a(inst)
        p2_adv_b(a)

def p2_tile_reads(n, stage):
    ks, ct = divmod(n, 4)
    return [f"ds_read_b64_tr_b16 {ar(A2_B+4*n+2*hh,2)}, v{V2_R[ct]} offset:{stage*8192+ks*4096+hh*2048}" for hh in range(2)]

def p2_step(a, pos, base, vm, loads=True, extra=None):
    ops = (p2_a_ops((pos + ND2) % 8) + p2_b_ops((pos + ND2) % 8)) if loads else []
    at = [0, 1, 2, 3, 3, 4]
    pending = list(zip(at, ops))
    for n in range(8):
        ks, ct = divmod(n, 4)
        if n == 5:
            a(f"s_waitcnt vmcnt({vm})"); a("s_barrier")
        rd = p2_tile_reads((n + 3) % 8, pos if n + 3 < 8 else (pos + 1) % 8)
        a("s_waitcnt lgkmcnt(4)")
        slots = [[rd[0]], [rd[1]]]
        for pre, inst in [op for (t, op) in pending if t == n]:
            if pre: slots[0].append(pre)
            slots[1].append(inst)
        if n == 5 and loads:
            t = Asm(); p2_adv_a(t); p2_adv_b(t); slots[1] += t.L
        if extra and n in extra: slots[1] += extra[n]
        for tt in range(2):
            xa = A2_A + pos * 16 + (ks * 2 + tt) * 4
            c = acc2(base, ct, tt)
            a(f"v_mfma_f32_16x16x32_bf16 {vr(c,4)}, {ar(A2_B+4*n,4)}, {ar(xa,4)}, {vr(c,4)}")
            for x in slots[tt]: a(x)

def p2(a, o):
    L = V_LANE
    a(f"v_lshlrev_b32 v{V2_A[0]}, 4, v{L}"); a(f"v_add_u32 v{V2_A[1]}, {HT}, v{V2_A[0]}")
    a(f"s_lshl_b32 s{S_T}, s{S_RB}, 3"); a(f"s_lshl_b32 s{S_T2}, s{S_W}, 1"); a(f"s_add_u32 s{S_T}, s{S_T}, s{S_T2}")
    a(f"s_mul_i32 s{S2_KA}, s{S_T}, {HT}"); a(f"s_add_u32 s{S2_KA}, s{S2_KA}, {HF}")
    a(f"s_add_u32 s{S2_KAMAX}, s{S2_KA}, {55*2048}")
    a(f"s_lshl_b32 s{S_T4}, s{S_T}, 15"); a(f"s_add_u32 s{S_T4}, s{S_T4}, {OF}")
    a(f"v_lshrrev_b32 v{T0}, 4, v{L}"); a(f"v_bfe_u32 v{T1}, v{L}, 2, 2"); a(f"v_and_b32 v{T2}, 3, v{L}")
    a(f"v_lshl_add_u32 v{T3}, v{T0}, 2, v{T1}")
    a(f"v_lshrrev_b32 v46, 1, v{T3}"); a(f"v_and_b32 v46, 3, v46"); a(f"v_lshlrev_b32 v46, 5, v46")
    a(f"v_lshl_add_u32 v46, v{T3}, 7, v46"); a(f"v_lshl_add_u32 v46, v{T2}, 3, v46"); a(f"v_add_u32 v{V2_R[0]}, {P2R}, v46")
    for ct in range(1, 4): a(f"v_xor_b32 v{V2_R[ct]}, {32*ct}, v{V2_R[0]}")
    a(f"s_lshl_b32 s{S_T}, s{S_T}, 4"); a(f"v_and_b32 v{T1}, 15, v{L}"); a(f"v_add_u32 v{T1}, s{S_T}, v{T1}")
    a(f"v_lshlrev_b32 v{T1}, 11, v{T1}"); a(f"v_lshl_add_u32 v{T1}, v{T0}, 3, v{T1}")
    a(f"s_lshl_b32 s{S_T2}, s{S_CB}, 7"); a(f"v_add_u32 v{V2_XO}, s{S_T2}, v{T1}"); a(f"v_add_u32 v{V2_XO+1}, 32768, v{V2_XO}")
    srd(a, SRD_A, P_X, None, 2048 * 2048)
    for ct in range(4):
        for tt in range(2):
            a(f"buffer_load_dwordx2 {vr(V2_X+(ct*2+tt)*2,2)}, v{V2_XO+tt}, s[{SRD_A}:{SRD_A+3}], 0 offen offset:{32*ct}")
    a(f"s_lshl_b32 s{S_T2}, s{S_CB}, 7"); srd(a, SRD_B, P_B2, S_T2, 2048)
    a(f"v_lshlrev_b32 v{T0}, 3, v{T0}")
    for ct in range(4):
        a(f"buffer_load_dwordx2 {vr(32+2*ct,2)}, v{T0}, s[{SRD_B}:{SRD_B+3}], 0 offen offset:{32*ct}")
    a("s_waitcnt vmcnt(0)"); a("s_barrier")
    cnt_off(a, S_I, 4, S_T2); signal(a, f"s{S_T2}")
    for ct in range(4):
        c = acc2(ACC_O, ct, 0); b = 32 + 2 * ct
        a(f"v_lshlrev_b32 v{c}, 16, v{b}"); a(f"v_and_b32 v{c+1}, 0xffff0000, v{b}")
        a(f"v_lshlrev_b32 v{c+2}, 16, v{b+1}"); a(f"v_and_b32 v{c+3}, 0xffff0000, v{b+1}")
        for r in range(4): a(f"v_mov_b32 v{acc2(ACC_O,ct,1)+r}, v{c+r}")
    for r in range(32): a(f"v_mov_b32 v{ACC_S+r}, 0")
    a(f"s_lshr_b32 s{S_T5}, s{S_RB}, 1")
    for n in range(3):
        for inst in p2_tile_reads(n, 0): a(inst)
    cnt_off(a, S_T5, 2, S_T2); poll(a, f"s{S_T2}", 32)
    a("s_barrier")
    for st in range(ND2):
        for pre, inst in p2_a_ops(st): a(inst)
        p2_adv_a(a)
    a(f"s_waitcnt vmcnt({4*(ND2-1)})")
    srd(a, SRD_A, P_OUT, None, 2048 * 2048)
    vms = [22, 24, 26, 28, 30, 30, 30, 30]
    a(f"s_mov_b32 s{S2_IT}, 0")
    a(".p2align 3")
    a("L_p2_loop:")
    for pos in range(8):
        if pos == 2:
            Ls = label("nosw")
            a(f"s_cmp_lg_u32 s{S2_IT}, 6"); a(f"s_cbranch_scc1 {Ls}")
            cnt_off(a, S_T5, 4, S_T2); poll(a, f"s{S_T2}", 32)
            a("s_barrier")
            a(f"s_mov_b32 s{S2_KA}, s{S_T4}"); a(f"s_add_u32 s{S2_KAMAX}, s{S2_KA}, {15*2048}")
            a(f"v_add_u32 v{V2_A[1]}, {OT}, v{V2_A[0]}")
            a(f"s_lshl_b32 s{S_T}, s{S_CB}, 7"); srd(a, SRD_W2, P_WO, S_T, 1024 * 2048)
            a(f"s_lshl_b32 s{S2_KB}, s{S_W}, 15"); a(f"s_add_u32 s{S2_KBMAX}, s{S2_KB}, {15*64*2048}")
            a(f"{Ls}:")
        p2_step(a, pos, ACC_O, vms[pos])
    a(f"s_add_u32 s{S2_IT}, s{S2_IT}, 1"); a(f"s_cmp_lt_u32 s{S2_IT}, 7"); a("s_cbranch_scc1 L_p2_loop")
    a(f"s_mov_b32 s{S2_IT}, 0")
    a(".p2align 3")
    a("L_p2s_loop:")
    for pos in range(8): p2_step(a, pos, ACC_S, 30)
    a(f"s_add_u32 s{S2_IT}, s{S2_IT}, 1"); a(f"s_cmp_lt_u32 s{S2_IT}, 2"); a("s_cbranch_scc1 L_p2s_loop")
    a("s_waitcnt vmcnt(0)")
    a(f"s_mov_b32 s{S_L2E}, 0xbfb8aa3b")
    for ct in range(4):
        for tt in range(2):
            co = acc2(ACC_O, ct, tt); cs = acc2(ACC_S, ct, tt); xr = V2_X + (ct * 2 + tt) * 2
            t = 112
            for r in range(4): a(f"v_mul_f32 v{t+r}, s{S_L2E}, v{co+r}")
            for r in range(4): a(f"v_exp_f32 v{t+r}, v{t+r}")
            for r in range(4): a(f"v_add_f32 v{t+r}, 1.0, v{t+r}")
            for r in range(4): a(f"v_rcp_f32 v{t+r}, v{t+r}")
            for r in range(4): a(f"v_mul_f32 v{co+r}, v{co+r}, v{t+r}")
            a(f"v_lshlrev_b32 v{t}, 16, v{xr}"); a(f"v_and_b32 v{t+1}, 0xffff0000, v{xr}")
            a(f"v_lshlrev_b32 v{t+2}, 16, v{xr+1}"); a(f"v_and_b32 v{t+3}, 0xffff0000, v{xr+1}")
            for r in range(4): a(f"v_fmac_f32 v{t+r}, v{co+r}, v{cs+r}")
            d = 120 + 2 * ((ct * 2 + tt) % 4)
            a(f"v_cvt_pk_bf16_f32 v{d}, v{t}, v{t+1}"); a(f"v_cvt_pk_bf16_f32 v{d+1}, v{t+2}, v{t+3}")
            a(f"buffer_store_dwordx2 {vr(d,2)}, v{V2_XO+tt}, s[{SRD_A}:{SRD_A+3}], 0 offen offset:{32*ct}")

HEADER = """; Fused hedgehog linear attention + squared-relu MLP gate, one persistent launch (generated by my own generator script)
; @launch grid=(256,1,1) block=(256,1,1) lds={lds}
.amdgcn_target "amdgcn-amd-amdhsa--gfx950"
.text
.globl {name}
.p2align 8
.type {name},@function
{name}:
"""
FOOTER = """L_end:
s_endpgm
.section .rodata,"a"
.p2align 6
.amdhsa_kernel {name}
  .amdhsa_next_free_vgpr 512
  .amdhsa_next_free_sgpr 102
  .amdhsa_accum_offset 256
  .amdhsa_group_segment_fixed_size 0
  .amdhsa_kernarg_size 96
  .amdhsa_user_sgpr_count 2
  .amdhsa_user_sgpr_kernarg_segment_ptr 1
  .amdhsa_system_sgpr_workgroup_id_x 1
.end_amdhsa_kernel
"""
def build(o={}):
    _lab[0] = 0
    a = Asm()
    phase0(a, o)
    p1_main(a, o)
    if o.get("stop") == "p1":
        a("s_waitcnt vmcnt(0) lgkmcnt(0)")
    else:
        mid(a, o)
        if o.get("stop") == "mid": a("s_waitcnt vmcnt(0) lgkmcnt(0)")
        else: p2(a, o)
    lines = fix_hazards(a.L)
    return HEADER.format(name=NAME, lds=LDS_SIZE) + "\n".join(lines) + "\n" + FOOTER.format(name=NAME)

if __name__ == "__main__":
    out = sys.argv[1] if len(sys.argv) > 1 else "k.s"
    o = {}
    for x in sys.argv[2:]:
        k, _, v = x.partition("="); o[k] = int(v) if v.lstrip("-").isdigit() else (v or 1)
    open(out, "w").write(build(o))
    print("wrote", out)
```
